```python
import torch

def _softmax(x, axis=-1):
    return torch.softmax(x, dim=axis)

def _gelu(x):
    return torch.nn.functional.gelu(x, approximate='tanh')

def _silu(x):
    return torch.nn.functional.silu(x)

def _sigmoid(x):
    return torch.sigmoid(x)

def _layernorm(x, axis=-1, eps=1e-05):
    m = x.mean(dim=axis, keepdim=True)
    v = x.var(dim=axis, keepdim=True, unbiased=False)
    return (x - m) / torch.sqrt(v + eps)

def _scatter_add(tgt, idx, src, axis=0):
    return tgt.clone().index_add_(axis, idx, src)

def _segment_sum(src, seg, n):
    out = torch.zeros((n,) + src.shape[1:], dtype=src.dtype)
    return out.index_add_(0, seg, src)

def _pad(x, pw):
    flat = tuple((v for pair in reversed(pw) for v in pair))
    return torch.nn.functional.pad(x, flat)
kernel_name = 'adaLN_cond__mha_block__glu_gated_bilinear__prompt'

def setup_inputs():

    _w = lambda a: (lambda t: t.to(torch.bfloat16) if t.is_floating_point() else t)(torch.as_tensor(a))

    def _A_setup():
        B, S, D, H = (1, 2048, 576, 32)
        return {'x': _w((lambda *s: torch.randn(*s, dtype=torch.bfloat16) * 0.05)(B, S, D)), 'wqkv': _w((lambda *s: torch.randn(*s, dtype=torch.bfloat16) * 0.05)(D, 3 * D)), 'wo': _w((lambda *s: torch.randn(*s, dtype=torch.bfloat16) * 0.05)(D, D))}
    _A_in = _A_setup()

    def _B_setup():
        B, S, D, F = (1, 2048, 576, 4608)
        return {'x': _w((lambda *s: torch.randn(*s, dtype=torch.bfloat16) * 0.05)(B, S, D)), 'w_gate': _w((lambda *s: torch.randn(*s, dtype=torch.bfloat16) * 0.8)(D, F) * D ** (-0.5)), 'w_up': _w((lambda *s: torch.randn(*s, dtype=torch.bfloat16) * 0.8)(D, F) * D ** (-0.5)), 'w_down': _w((lambda *s: torch.randn(*s, dtype=torch.bfloat16) * 0.8)(F, D) * F ** (-0.5))}
    _B_in = _B_setup()
    return {'A_x': _A_in['x'], 'A_wqkv': _A_in['wqkv'], 'A_wo': _A_in['wo'], 'B_x': _B_in['x'], 'B_w_gate': _B_in['w_gate'], 'B_w_up': _B_in['w_up'], 'B_w_down': _B_in['w_down'], 'c': _w((lambda *s: torch.randn(*s, dtype=torch.bfloat16) * 0.2)(1, 576) * 8.0), 'w_mod': _w((lambda *s: torch.randn(*s, dtype=torch.bfloat16) * 0.2)(576, 6 * 576) * 576 ** (-0.5) * 8.0)}

def reference(A_x, A_wqkv, A_wo, B_x, B_w_gate, B_w_up, B_w_down, c, w_mod):

    def _A_ref(x, wqkv, wo):
        B, S, D = x.shape
        H = 32
        Dh = D // H
        qkv = (lambda x, *d: x.permute(*d))((x @ wqkv).reshape(B, S, 3, H, Dh), 2, 0, 3, 1, 4)
        q, k, v = (qkv[0], qkv[1], qkv[2])
        scores = torch.einsum('bhqd,bhkd->bhqk', q, k) * Dh ** (-0.5)
        p = _softmax(scores, axis=-1)
        o = torch.einsum('bhqk,bhkd->bhqd', p, v)
        return (lambda x, *d: x.permute(*d))(o, 0, 2, 1, 3).reshape(B, S, D) @ wo

    def _B_ref(x, w_gate, w_up, w_down):
        g = torch.einsum('bsd,df->bsf', x, w_gate)
        u = torch.einsum('bsd,df->bsf', x, w_up)
        h = g * u
        return torch.einsum('bsf,fd->bsd', h, w_down)
    x = A_x
    mod = (_silu(c) @ w_mod).reshape(c.shape[0], 6, 1, -1)
    sa, ca, ga, sb, cb, gb = (mod[:, 0].clone(), mod[:, 1].clone(), mod[:, 2].clone(), mod[:, 3].clone(), mod[:, 4].clone(), mod[:, 5].clone())
    h = _layernorm(x, axis=-1) * (1 + ca) + sa
    x = x + ga * _A_ref(h, A_wqkv, A_wo)
    h = _layernorm(x, axis=-1) * (1 + cb) + sb
    x = x + gb * _B_ref(h, B_w_gate, B_w_up, B_w_down)
    return x
```

```python
class Asm:
    def __init__(self):
        self.lines = []
        Asm.cnt = getattr(Asm, 'cnt', 0) + 1
        self.uid = Asm.cnt * 100000
    def __call__(self, s):
        for l in s.strip('\n').split('\n'):
            self.lines.append('    ' + l.strip())
    def label(self, name):
        self.lines.append(name + ':')
    def newlabel(self, base='L'):
        self.uid += 1
        return f'{base}_{self.uid}'
    def text(self):
        return '\n'.join(self.lines) + '\n'

def kernel_header(a, name):
    a.lines.append(f'.globl {name}')
    a.lines.append('.p2align 8')
    a.lines.append(f'.type {name},@function')
    a.lines.append(f'{name}:')

def kernel_desc(name, vgpr, accum, sgpr=102):
    return f""".p2align 6
.amdhsa_kernel {name}
  .amdhsa_next_free_vgpr {vgpr}
  .amdhsa_next_free_sgpr {sgpr}
  .amdhsa_accum_offset {accum}
  .amdhsa_group_segment_fixed_size 0
  .amdhsa_kernarg_size 96
  .amdhsa_user_sgpr_count 2
  .amdhsa_user_sgpr_kernarg_segment_ptr 1
  .amdhsa_system_sgpr_workgroup_id_x 1
.end_amdhsa_kernel
"""

def srd(a, d, b, nbytes, off=0):
    if off:
        a(f's_add_u32 s{d}, s{b}, {hex(off)}')
        a(f's_addc_u32 s{d+1}, s{b+1}, 0')
    else:
        a(f's_mov_b32 s{d}, s{b}')
        a(f's_mov_b32 s{d+1}, s{b+1}')
    a(f's_and_b32 s{d+1}, s{d+1}, 0xffff')
    a(f's_mov_b32 s{d+2}, {hex(nbytes)}')
    a(f's_mov_b32 s{d+3}, 0x00020000')
```

```python
import sys
from asmlib import *
S, D, H, DH, F = 2048, 576, 32, 18, 4608
W_MOD = 0x0
W_ST1 = 0x4000
W_ST2 = 0x8000
W_Q   = 0x100000
W_K   = 0x500000
W_VT  = 0x900000
W_O   = 0xD00000
W_X1  = 0x1000000
W_HM  = 0x1400000
W_PART= 0x2800000
WS_BYTES = 0x10000000
KA_X, KA_WQKV, KA_WO, KA_BX, KA_WG, KA_WU, KA_WD, KA_C, KA_WMOD, KA_OUT, KA_DBG, KA_WS = [8*i for i in range(12)]

kernels = []

def wave_sum2(a, va, vb, vt, vaddr):
    for m in (1, 2, 4, 8, 16, 32):
        a(f'v_xor_b32 v{vaddr}, {m}, v{vaddr+1}')
        a(f'v_lshlrev_b32 v{vaddr}, 2, v{vaddr}')
        a(f'ds_bpermute_b32 v{vt}, v{vaddr}, v{va}')
        a(f'ds_bpermute_b32 v{vt+1}, v{vaddr}, v{vb}')
        a('s_waitcnt lgkmcnt(0)')
        a(f'v_add_f32 v{va}, v{va}, v{vt}')
        a(f'v_add_f32 v{vb}, v{vb}, v{vt+1}')

def gen_k0():
    a = Asm(); name = 'k0_kernel'
    kernel_header(a, name)
    NMOD, NLN = 54, 64
    a(f's_cmp_ge_u32 s2, {NMOD+NLN}')
    a('s_cbranch_scc1 k0_end')
    a(f's_load_dwordx2 s[4:5], s[0:1], {KA_WMOD}')
    a(f's_load_dwordx2 s[6:7], s[0:1], {KA_C}')
    a(f's_load_dwordx2 s[8:9], s[0:1], {KA_WS}')
    a(f's_load_dwordx2 s[10:11], s[0:1], {KA_X}')
    a('s_waitcnt lgkmcnt(0)')
    a(f's_cmp_ge_u32 s2, {NMOD}')
    a('s_cbranch_scc1 k0_ln')
    srd(a, 12, 4, 576*3456*2)
    srd(a, 16, 6, 576*2)
    srd(a, 20, 8, 3456*4, W_MOD)
    a('v_and_b32 v1, 7, v0')
    a('v_lshrrev_b32 v2, 3, v0')
    a('s_lshl_b32 s24, s2, 7')
    a('v_lshlrev_b32 v3, 4, v1')
    a('v_add_u32 v3, s24, v3')
    a(f's_mov_b32 s25, {3456*2}')
    a('v_mul_lo_u32 v4, v2, s25')
    a('v_add_u32 v3, v3, v4')
    a('v_lshlrev_b32 v5, 1, v2')
    for j in range(8):
        a(f'v_mov_b32 v{10+j}, 0')
    for it in range(18):
        a(f'buffer_load_dwordx4 v[20:23], v3, s[12:15], 0 offen')
        a(f'buffer_load_ushort v24, v5, s[16:19], 0 offen')
        a(f'v_add_u32 v3, {32*3456*2}, v3')
        a('v_add_u32 v5, 64, v5')
        a('s_waitcnt vmcnt(0)')
        a('v_lshlrev_b32 v24, 16, v24')
        a('v_mul_f32 v25, 0xbfb8aa3b, v24')
        a('v_exp_f32 v25, v25')
        a('s_nop 0')
        a('v_add_f32 v25, 1.0, v25')
        a('v_rcp_f32 v25, v25')
        a('s_nop 0')
        a('v_mul_f32 v24, v24, v25')
        for j in range(4):
            a(f'v_lshlrev_b32 v26, 16, v{20+j}')
            a(f'v_and_b32 v27, 0xffff0000, v{20+j}')
            a(f'v_fmac_f32 v{10+2*j}, v24, v26')
            a(f'v_fmac_f32 v{11+2*j}, v24, v27')
    a('v_lshlrev_b32 v6, 8, v2')
    a('v_lshlrev_b32 v7, 5, v1')
    a('v_add_u32 v6, v6, v7')
    a('ds_write_b128 v6, v[10:13]')
    a('ds_write_b128 v6, v[14:17] offset:16')
    a('s_waitcnt lgkmcnt(0)')
    a('s_barrier')
    a('v_cmp_gt_u32 vcc, 64, v0')
    a('s_and_saveexec_b64 s[26:27], vcc')
    a('s_cbranch_execz k0_end')
    a('v_lshlrev_b32 v6, 2, v0')
    a('v_mov_b32 v10, 0')
    for kr in range(32):
        a(f'ds_read_b32 v11, v6 offset:{kr*256}')
        a('s_waitcnt lgkmcnt(0)')
        a('v_add_f32 v10, v10, v11')
    a('s_lshl_b32 s24, s2, 8')
    a('v_add_u32 v6, s24, v6')
    a('buffer_store_dword v10, v6, s[20:23], 0 offen')
    a('s_branch k0_end')
    a.label('k0_ln')
    srd(a, 12, 10, S*D*2)
    srd(a, 20, 8, 2*S*4, W_ST1)
    a('v_lshrrev_b32 v1, 6, v0')
    a('v_and_b32 v3, 63, v0')
    a(f's_sub_u32 s24, s2, {NMOD}')
    a('s_lshl_b32 s24, s24, 5')
    a('v_lshlrev_b32 v4, 3, v1')
    a('v_add_u32 v4, s24, v4')
    for r in range(8):
        a(f's_mov_b32 s25, {D*2}')
        a('v_mul_lo_u32 v5, v4, s25')
        a('v_lshlrev_b32 v6, 4, v3')
        a('v_add_u32 v5, v5, v6')
        a('v_mov_b32 v24, 0'); a('v_mov_b32 v25, 0'); a('v_mov_b32 v26, 0'); a('v_mov_b32 v27, 0')
        a('buffer_load_dwordx4 v[20:23], v5, s[12:15], 0 offen')
        a('v_cmp_gt_u32 vcc, 8, v3')
        a('s_and_saveexec_b64 s[26:27], vcc')
        a('buffer_load_dwordx4 v[24:27], v5, s[12:15], 0 offen offset:1024')
        a('s_mov_b64 exec, s[26:27]')
        a('s_waitcnt vmcnt(0)')
        a('v_mov_b32 v10, 0'); a('v_mov_b32 v11, 0')
        for j in range(8):
            a(f'v_lshlrev_b32 v12, 16, v{20+j}')
            a(f'v_and_b32 v13, 0xffff0000, v{20+j}')
            a('v_add_f32 v10, v10, v12'); a('v_fmac_f32 v11, v12, v12')
            a('v_add_f32 v10, v10, v13'); a('v_fmac_f32 v11, v13, v13')
        a('v_mov_b32 v31, v3')
        wave_sum2(a, 10, 11, 14, 30)
        a(f'v_mul_f32 v10, {1.0/D}, v10')
        a(f'v_mul_f32 v11, {1.0/D}, v11')
        a('v_fma_f32 v11, -v10, v10, v11')
        a('v_add_f32 v11, 0x3727c5ac, v11')
        a('v_rsq_f32 v11, v11')
        a('v_lshlrev_b32 v6, 2, v4')
        a(f'v_add_u32 v7, {S*4}, v6')
        a('v_cmp_eq_u32 vcc, 0, v3')
        a('s_and_saveexec_b64 s[26:27], vcc')
        a('buffer_store_dword v10, v6, s[20:23], 0 offen')
        a('buffer_store_dword v11, v7, s[20:23], 0 offen')
        a('s_mov_b64 exec, s[26:27]')
        a('v_add_u32 v4, 1, v4')
    a.label('k0_end')
    a('s_endpgm')
    kernels.append((name, (NMOD+NLN, 1, 1), (256, 1, 1), 8192, a.text(), kernel_desc(name, 32, 32)))

def emit(path):
    out = []
    hdr = open('adaLN_cond__mha_block__glu_gated_bilinear__prompt.s.ref').read().split('\n')
    for l in hdr[:13]:
        out.append(l)
    for (name, g, b, lds, _, _) in kernels:
        out.append(f'; @launch kernel={name} grid=({g[0]},{g[1]},{g[2]}) block=({b[0]},{b[1]},{b[2]}) lds={lds}')
    out.append('.amdgcn_target "amdgcn-amd-amdhsa--gfx950"')
    out.append('.text')
    for k in kernels:
        out.append(k[4])
    out.append('.section .rodata,"a"')
    for k in kernels:
        out.append(k[5])
    open(path, 'w').write('\n'.join(out) + '\n')

if __name__ == '__main__':
    import importlib
    gen_k0()
    for m in ('k1', 'k2', 'k3', 'k4', 'k5'):
        try:
            mod = importlib.import_module('gen_' + m)
        except ImportError:
            continue
        mod.gen(kernels)
    emit('adaLN_cond__mha_block__glu_gated_bilinear__prompt.s')
```

```python
import sys
from asmlib import *
S, D, H, DH, F = 2048, 576, 32, 18, 4608
W_MOD = 0x0
W_ST1 = 0x4000
W_ST2 = 0x8000
W_Q   = 0x100000
W_K   = 0x500000
W_VT  = 0x900000
W_O   = 0xD00000
W_X1  = 0x1000000
W_HM  = 0x1400000
W_PART= 0x2800000
W_H = 0x3C00000
WS_BYTES = 0x10000000
KA_X, KA_WQKV, KA_WO, KA_BX, KA_WG, KA_WU, KA_WD, KA_C, KA_WMOD, KA_OUT, KA_DBG, KA_WS = [8*i for i in range(12)]

kernels = []

def wave_sum2(a, va, vb, vt, vaddr):
    for m in (1, 2, 4, 8, 16, 32):
        a(f'v_xor_b32 v{vaddr}, {m}, v{vaddr+1}')
        a(f'v_lshlrev_b32 v{vaddr}, 2, v{vaddr}')
        a(f'ds_bpermute_b32 v{vt}, v{vaddr}, v{va}')
        a(f'ds_bpermute_b32 v{vt+1}, v{vaddr}, v{vb}')
        a('s_waitcnt lgkmcnt(0)')
        a(f'v_add_f32 v{va}, v{va}, v{vt}')
        a(f'v_add_f32 v{vb}, v{vb}, v{vt+1}')

def gen_k0():
    a = Asm(); name = 'k0_kernel'
    kernel_header(a, name)
    NMOD, NLN = 54, 0
    a(f's_cmp_ge_u32 s2, {NMOD+NLN}')
    a('s_cbranch_scc1 k0_end')
    a(f's_load_dwordx2 s[4:5], s[0:1], {KA_WMOD}')
    a(f's_load_dwordx2 s[6:7], s[0:1], {KA_C}')
    a(f's_load_dwordx2 s[8:9], s[0:1], {KA_WS}')
    a(f's_load_dwordx2 s[10:11], s[0:1], {KA_X}')
    a('s_waitcnt lgkmcnt(0)')
    a(f's_cmp_ge_u32 s2, {NMOD}')
    a('s_cbranch_scc1 k0_ln')
    srd(a, 12, 4, 576*3456*2)
    srd(a, 16, 6, 576*2)
    srd(a, 20, 8, 3456*4, W_MOD)
    a('v_and_b32 v1, 7, v0')
    a('v_lshrrev_b32 v2, 3, v0')
    a('s_lshl_b32 s24, s2, 7')
    a('v_lshlrev_b32 v3, 4, v1')
    a('v_add_u32 v3, s24, v3')
    a(f's_mov_b32 s25, {3456*2}')
    a('v_mul_lo_u32 v4, v2, s25')
    a('v_add_u32 v3, v3, v4')
    a('v_lshlrev_b32 v5, 1, v2')
    for j in range(8):
        a(f'v_mov_b32 v{10+j}, 0')
    a('s_mov_b32 s26, 0'); a.label('k0_lp')
    for it in range(1):
        a(f'buffer_load_dwordx4 v[20:23], v3, s[12:15], 0 offen')
        a(f'buffer_load_ushort v24, v5, s[16:19], 0 offen')
        a(f'v_add_u32 v3, {32*3456*2}, v3')
        a('v_add_u32 v5, 64, v5')
        a('s_waitcnt vmcnt(0)')
        a('v_lshlrev_b32 v24, 16, v24')
        a('v_mul_f32 v25, 0xbfb8aa3b, v24')
        a('v_exp_f32 v25, v25')
        a('s_nop 0')
        a('v_add_f32 v25, 1.0, v25')
        a('v_rcp_f32 v25, v25')
        a('s_nop 0')
        a('v_mul_f32 v24, v24, v25')
        for j in range(4):
            a(f'v_lshlrev_b32 v26, 16, v{20+j}')
            a(f'v_and_b32 v27, 0xffff0000, v{20+j}')
            a(f'v_fmac_f32 v{10+2*j}, v24, v26')
            a(f'v_fmac_f32 v{11+2*j}, v24, v27')
    a('s_add_u32 s26, s26, 1'); a('s_cmp_lt_u32 s26, 18'); a('s_cbranch_scc1 k0_lp')
    a('v_lshlrev_b32 v6, 8, v2')
    a('v_lshlrev_b32 v7, 5, v1')
    a('v_add_u32 v6, v6, v7')
    a('ds_write_b128 v6, v[10:13]')
    a('ds_write_b128 v6, v[14:17] offset:16')
    a('s_waitcnt lgkmcnt(0)')
    a('s_barrier')
    a('v_cmp_gt_u32 vcc, 64, v0')
    a('s_and_saveexec_b64 s[26:27], vcc')
    a('s_cbranch_execz k0_end')
    a('v_lshlrev_b32 v6, 2, v0')
    a('v_mov_b32 v10, 0')
    for kr in range(32):
        a(f'ds_read_b32 v11, v6 offset:{kr*256}')
        a('s_waitcnt lgkmcnt(0)')
        a('v_add_f32 v10, v10, v11')
    a('s_lshl_b32 s24, s2, 8')
    a('v_add_u32 v6, s24, v6')
    a('buffer_store_dword v10, v6, s[20:23], 0 offen')
    a('s_branch k0_end')
    a.label('k0_ln')
    a.label('k0_end')
    a('s_endpgm')
    kernels.append((name, (NMOD+NLN, 1, 1), (256, 1, 1), 8192, a.text(), kernel_desc(name, 32, 32)))

def emit(path):
    out = []
    hdr = open('adaLN_cond__mha_block__glu_gated_bilinear__prompt.s.ref').read().split('\n')
    for l in hdr[:13]:
        out.append(l)
    for (name, g, b, lds, _, _) in kernels:
        out.append(f'; @launch kernel={name} grid=({g[0]},{g[1]},{g[2]}) block=({b[0]},{b[1]},{b[2]}) lds={lds}')
    out.append('.amdgcn_target "amdgcn-amd-amdhsa--gfx950"')
    out.append('.text')
    for k in kernels:
        out.append(k[4])
    out.append('.section .rodata,"a"')
    for k in kernels:
        out.append(k[5])
    open(path, 'w').write('\n'.join(out) + '\n')

if __name__ == '__main__':
    import importlib
    gen_k0()
    for m in ('k1', 'k2', 'k3', 'k4', 'k5'):
        try:
            mod = importlib.import_module('gen_' + m)
        except ImportError:
            continue
        mod.gen(kernels)
    emit('adaLN_cond__mha_block__glu_gated_bilinear__prompt.s')
```

```python
import sys
from asmlib import *
S, D, H, DH, F = 2048, 576, 32, 18, 4608
W_MOD = 0x0
W_ST1 = 0x4000
W_ST2 = 0x8000
W_Q   = 0x100000
W_K   = 0x500000
W_VT  = 0x900000
W_O   = 0xD00000
W_X1  = 0x1000000
W_HM  = 0x1400000
W_PART= 0x2800000
W_H = 0x3C00000
WS_BYTES = 0x10000000
KA_X, KA_WQKV, KA_WO, KA_BX, KA_WG, KA_WU, KA_WD, KA_C, KA_WMOD, KA_OUT, KA_DBG, KA_WS = [8*i for i in range(12)]

kernels = []

def wave_sum2(a, va, vb, vt, vaddr):
    for m in (1, 2, 4, 8, 16, 32):
        a(f'v_xor_b32 v{vaddr}, {m}, v{vaddr+1}')
        a(f'v_lshlrev_b32 v{vaddr}, 2, v{vaddr}')
        a(f'ds_bpermute_b32 v{vt}, v{vaddr}, v{va}')
        a(f'ds_bpermute_b32 v{vt+1}, v{vaddr}, v{vb}')
        a('s_waitcnt lgkmcnt(0)')
        a(f'v_add_f32 v{va}, v{va}, v{vt}')
        a(f'v_add_f32 v{vb}, v{vb}, v{vt+1}')

def gen_k0():
    a = Asm(); name = 'k0_kernel'
    kernel_header(a, name)
    NMOD, NLN = 54, 0
    a(f's_cmp_ge_u32 s2, {NMOD+NLN}')
    a('s_cbranch_scc1 k0_end')
    a(f's_load_dwordx2 s[4:5], s[0:1], {KA_WMOD}')
    a(f's_load_dwordx2 s[6:7], s[0:1], {KA_C}')
    a(f's_load_dwordx2 s[8:9], s[0:1], {KA_WS}')
    a(f's_load_dwordx2 s[10:11], s[0:1], {KA_X}')
    a('s_waitcnt lgkmcnt(0)')
    a(f's_cmp_ge_u32 s2, {NMOD}')
    a('s_cbranch_scc1 k0_ln')
    srd(a, 12, 4, 576*3456*2)
    srd(a, 16, 6, 576*2)
    srd(a, 20, 8, 3456*4, W_MOD)
    a('v_and_b32 v1, 7, v0')
    a('v_lshrrev_b32 v2, 3, v0')
    a('s_lshl_b32 s24, s2, 7')
    a('v_lshlrev_b32 v3, 4, v1')
    a('v_add_u32 v3, s24, v3')
    a(f's_mov_b32 s25, {3456*2}')
    a('v_mul_lo_u32 v4, v2, s25')
    a('v_add_u32 v3, v3, v4')
    a('v_lshlrev_b32 v5, 1, v2')
    for j in range(8):
        a(f'v_mov_b32 v{10+j}, 0')
    a('s_mov_b32 s26, 0'); a.label('k0_lp')
    for u in range(6):
        a(f'buffer_load_dwordx4 v[{32+4*u}:{35+4*u}], v3, s[12:15], 0 offen')
        a(f'buffer_load_ushort v{56+u}, v5, s[16:19], 0 offen')
        a(f'v_add_u32 v3, {32*3456*2}, v3'); a('v_add_u32 v5, 64, v5')
    a('s_waitcnt vmcnt(0)')
    for u in range(6):
        a(f'v_lshlrev_b32 v24, 16, v{56+u}')
        a('v_mul_f32 v25, 0xbfb8aa3b, v24'); a('v_exp_f32 v25, v25'); a('s_nop 0')
        a('v_add_f32 v25, 1.0, v25'); a('v_rcp_f32 v25, v25'); a('s_nop 0')
        a('v_mul_f32 v24, v24, v25')
        for j in range(4):
            a(f'v_lshlrev_b32 v26, 16, v{32+4*u+j}'); a(f'v_and_b32 v27, 0xffff0000, v{32+4*u+j}')
            a(f'v_fmac_f32 v{10+2*j}, v24, v26'); a(f'v_fmac_f32 v{11+2*j}, v24, v27')
    a('s_add_u32 s26, s26, 1'); a('s_cmp_lt_u32 s26, 3'); a('s_cbranch_scc1 k0_lp')
    a('v_lshlrev_b32 v6, 8, v2')
    a('v_lshlrev_b32 v7, 5, v1')
    a('v_add_u32 v6, v6, v7')
    a('ds_write_b128 v6, v[10:13]')
    a('ds_write_b128 v6, v[14:17] offset:16')
    a('s_waitcnt lgkmcnt(0)')
    a('s_barrier')
    a('v_cmp_gt_u32 vcc, 64, v0')
    a('s_and_saveexec_b64 s[26:27], vcc')
    a('s_cbranch_execz k0_end')
    a('v_lshlrev_b32 v6, 2, v0')
    a('v_mov_b32 v10, 0')
    for kr in range(32): a(f'ds_read_b32 v{12+kr}, v6 offset:{kr*256}')
    a('s_waitcnt lgkmcnt(0)')
    for kr in range(32): a(f'v_add_f32 v10, v10, v{12+kr}')
    a('s_lshl_b32 s24, s2, 8')
    a('v_add_u32 v6, s24, v6')
    a('buffer_store_dword v10, v6, s[20:23], 0 offen')
    a('s_branch k0_end')
    a.label('k0_ln')
    a.label('k0_end')
    a('s_endpgm')
    kernels.append((name, (NMOD+NLN, 1, 1), (256, 1, 1), 8192, a.text(), kernel_desc(name, 64, 64)))

def emit(path):
    out = []
    hdr = open('adaLN_cond__mha_block__glu_gated_bilinear__prompt.s.ref').read().split('\n')
    for l in hdr[:13]:
        out.append(l)
    for (name, g, b, lds, _, _) in kernels:
        out.append(f'; @launch kernel={name} grid=({g[0]},{g[1]},{g[2]}) block=({b[0]},{b[1]},{b[2]}) lds={lds}')
    out.append('.amdgcn_target "amdgcn-amd-amdhsa--gfx950"')
    out.append('.text')
    for k in kernels:
        out.append(k[4])
    out.append('.section .rodata,"a"')
    for k in kernels:
        out.append(k[5])
    open(path, 'w').write('\n'.join(out) + '\n')

if __name__ == '__main__':
    import importlib
    gen_k0()
    for m in ('k1', 'k2', 'k3', 'k4', 'k5'):
        try:
            mod = importlib.import_module('gen_' + m)
        except ImportError:
            continue
        mod.gen(kernels)
    emit('adaLN_cond__mha_block__glu_gated_bilinear__prompt.s')
```
